```python
import torch

def _softmax(x, axis=-1):
    return torch.softmax(x, dim=axis)
def _gelu(x):
    return torch.nn.functional.gelu(x, approximate="tanh")
def _silu(x):
    return torch.nn.functional.silu(x)
def _sigmoid(x):
    return torch.sigmoid(x)
def _layernorm(x, axis=-1, eps=1e-5):
    m = x.mean(dim=axis, keepdim=True)
    v = x.var(dim=axis, keepdim=True, unbiased=False)
    return (x - m) / torch.sqrt(v + eps)
def _scatter_add(tgt, idx, src, axis=0):
    return tgt.clone().index_add_(axis, idx, src)
def _segment_sum(src, seg, n):
    out = torch.zeros((n,) + src.shape[1:], dtype=src.dtype)
    return out.index_add_(0, seg, src)
def _pad(x, pw):
    flat = tuple(v for pair in reversed(pw) for v in pair)
    return torch.nn.functional.pad(x, flat)

kernel_name = 'sequential_preLN__gqa_block_cached__geglu_ffn__decode'

def setup_inputs():

    _w = (lambda a: (lambda t: t.to(torch.bfloat16) if t.is_floating_point() else t)(torch.as_tensor(a)))
    def _A_setup():
        B, Sq, D = 2, 1, 448
        Hq, Hkv, Sk, Dh = 16, 8, 8192, 256
        assert Hq % Hkv == 0, (Hq, Hkv)
        return {
            "x": _w((lambda *s: torch.randn(*s, dtype=torch.bfloat16) * 0.05)(B, Sq, D)),
            "k_cache": _w((lambda *s: torch.randn(*s, dtype=torch.bfloat16) * 3.2)(B, Hkv, Sk, Dh)),
            "v_cache": _w((lambda *s: torch.randn(*s, dtype=torch.bfloat16) * 0.4)(B, Hkv, Sk, Dh)),
            "wq": _w((lambda *s: torch.randn(*s, dtype=torch.bfloat16) * 3.2)(D, Hq * Dh) * (D ** -0.5)),
            "wo": _w((lambda *s: torch.randn(*s, dtype=torch.bfloat16) * 0.4)(Hq * Dh, D) * ((Hq * Dh) ** -0.5)),
        }
    _A_in = _A_setup()

    def _B_setup():
        B, S, D, F = 2, 1, 448, 1792
        return {
            "x": _w((lambda *s: torch.randn(*s, dtype=torch.bfloat16) * 0.05)(B, S, D)),
            "w_gate": _w((lambda *s: torch.randn(*s, dtype=torch.bfloat16) * 0.05)(D, F)),
            "w_up": _w((lambda *s: torch.randn(*s, dtype=torch.bfloat16) * 0.05)(D, F)),
            "w_down": _w((lambda *s: torch.randn(*s, dtype=torch.bfloat16) * 0.05)(F, D)),
        }
    _B_in = _B_setup()

    return {
        "A_x": _A_in["x"],
        "A_k_cache": _A_in["k_cache"],
        "A_v_cache": _A_in["v_cache"],
        "A_wq": _A_in["wq"],
        "A_wo": _A_in["wo"],
        "B_x": _B_in["x"],
        "B_w_gate": _B_in["w_gate"],
        "B_w_up": _B_in["w_up"],
        "B_w_down": _B_in["w_down"],
    }

def reference(A_x, A_k_cache, A_v_cache, A_wq, A_wo, B_x, B_w_gate, B_w_up, B_w_down):
    def _A_ref(x, k_cache, v_cache, wq, wo):
        B, Sq, D = x.shape
        Hq, Dh = 16, 256
        Hkv = k_cache.shape[1]
        rep = Hq // Hkv
        q = (lambda x, *d: x.permute(*d))((x @ wq).reshape(B, Sq, Hq, Dh), 0, 2, 1, 3)
        k = (lambda x, n, axis: torch.repeat_interleave(x, n, dim=axis))(k_cache, rep, axis=1)
        v = (lambda x, n, axis: torch.repeat_interleave(x, n, dim=axis))(v_cache, rep, axis=1)
        scores = torch.einsum("bhqd,bhkd->bhqk", q, k) * (Dh ** -0.5)
        p = _softmax(scores, axis=-1)
        o = torch.einsum("bhqk,bhkd->bhqd", p, v)
        return (lambda x, *d: x.permute(*d))(o, 0, 2, 1, 3).reshape(B, Sq, Hq * Dh) @ wo

    def _B_ref(x, w_gate, w_up, w_down):
        return (_gelu(x @ w_gate) * (x @ w_up)) @ w_down

    x = A_x
    h = x + _A_ref(_layernorm(x, axis=-1), A_k_cache, A_v_cache, A_wq, A_wo)
    h2 = h + _B_ref(_layernorm(h, axis=-1), B_w_gate, B_w_up, B_w_down)
    return h2
```

```python
import re

TRANS = ("v_exp_f32", "v_log_f32", "v_rcp_f32", "v_rsq_f32", "v_sqrt_f32", "v_sin_f32", "v_cos_f32")

def _regs(tok):
    tok = tok.strip()
    tok = re.sub(r"^-", "", tok)
    m = re.match(r"^abs\((.*)\)$", tok)
    if m: tok = m.group(1)
    m = re.match(r"^\|(.*)\|$", tok)
    if m: tok = m.group(1)
    m = re.match(r"^([vsa])(\d+)$", tok)
    if m: return {(m.group(1), int(m.group(2)))}
    m = re.match(r"^([vsa])\[(\d+):(\d+)\]$", tok)
    if m: return {(m.group(1), i) for i in range(int(m.group(2)), int(m.group(3)) + 1)}
    if tok in ("vcc", "vcc_lo", "vcc_hi"): return {("vcc", 0)}
    if tok in ("exec", "exec_lo", "exec_hi"): return {("exec", 0)}
    if tok == "m0": return {("m0", 0)}
    return set()

def _split_ops(s):
    ops, depth, cur = [], 0, ""
    for ch in s:
        if ch in "[(": depth += 1
        if ch in "])": depth -= 1
        if ch == "," and depth == 0:
            ops.append(cur.strip()); cur = ""
        else:
            cur += ch
    if cur.strip(): ops.append(cur.strip())
    return ops

class Ins:
    def __init__(self, text):
        self.text = text
        t = text.split(";")[0].strip()
        parts = t.split(None, 1)
        self.op = parts[0]
        rest = parts[1] if len(parts) > 1 else ""
        ops = _split_ops(rest)
        self.mods = ""
        if ops:
            last = ops[-1].split(None, 1)
            ops[-1] = last[0]
            self.mods = last[1] if len(last) > 1 else ""
        self.ops = ops
        op = self.op
        self.is_mfma = op.startswith("v_mfma")
        self.is_valu = op.startswith("v_") and not self.is_mfma
        self.is_dpp = op.endswith("_dpp") or "quad_perm" in self.mods or "row_" in self.mods
        self.is_perm = op.startswith("v_permlane")
        self.is_rdlane = op.startswith("v_readlane") or op.startswith("v_readfirstlane")
        self.is_trans = any(op.startswith(x) for x in TRANS)
        self.is_vmem = op.startswith(("buffer_", "global_", "flat_"))
        self.is_ds = op.startswith("ds_")
        self.is_salu = op.startswith("s_")
        self.is_lds_dma = self.is_vmem and re.search(r"\blds\b", self.mods) is not None
        self.wr, self.rd = set(), set()
        self.srcC = set(); self.srcAB = set()
        self.store_data = set()
        R = [_regs(o) for o in ops]
        if self.is_mfma:
            self.wr = R[0]; self.srcAB = R[1] | R[2]; self.srcC = R[3]; self.rd = self.srcAB | self.srcC
        elif self.is_valu:
            if op.startswith("v_cmp"):
                self.wr = R[0]; self.rd = set().union(*R[1:])
                if op.startswith("v_cmpx"): self.wr |= {("exec", 0)}
            elif self.is_perm and "swap" in op:
                self.wr = R[0] | R[1]; self.rd = R[0] | R[1]
            elif re.match(r"v_(add|sub|subrev)_co_u32|v_(addc|subb)_co_u32|v_div_scale|v_mad_u64", op):
                self.wr = R[0] | R[1]; self.rd = set().union(*R[2:])
            else:
                self.wr = R[0]; self.rd = set().union(*R[1:]) if len(R) > 1 else set()
                if op.startswith(("v_fmac", "v_dot2c", "v_writelane")) or self.is_dpp: self.rd |= R[0]
                if op.startswith("v_cndmask") and len(ops) == 3: self.rd |= {("vcc", 0)}
        elif self.is_vmem:
            if "load" in op and not self.is_lds_dma:
                self.wr = R[0]; self.rd = set().union(*R[1:])
            elif self.is_lds_dma:
                self.rd = set().union(*R) | {("m0", 0)}
            else:
                self.rd = set().union(*R) if R else set()
                if op.startswith("buffer_store") and ("x4" in op or "x3" in op): self.store_data = R[0]
                if op.startswith("global_store") and ("x4" in op or "x3" in op): self.store_data = R[1]
                if "atomic" in op and "sc0" in self.mods: self.wr = R[0]
        elif self.is_ds:
            if op.startswith(("ds_read", "ds_bpermute", "ds_permute", "ds_swizzle")) or "_rtn" in op:
                self.wr = R[0]; self.rd = set().union(*R[1:])
            else:
                self.rd = set().union(*R)
        elif self.is_salu:
            if op.startswith(("s_cmp", "s_cbranch", "s_branch", "s_waitcnt", "s_barrier", "s_nop", "s_sleep", "s_setprio", "s_endpgm", "s_bitcmp")):
                self.rd = set().union(*R) if R else set()
            else:
                self.wr = R[0] if R else set(); self.rd = set().union(*R[1:]) if len(R) > 1 else set()
                if "saveexec" in op: self.wr |= {("exec", 0)}
        self.states = 1
        if op == "s_nop": self.states = int(ops[0], 0) + 1

def passes(op):
    if "16x16x32" in op or "16x16x16" in op: return 4
    if "32x32x16" in op or "32x32x8" in op: return 8
    raise ValueError(op)

def need(p, c):
    n = 0
    vw = {r for r in p.wr if r[0] in "va"}
    sw = {r for r in p.wr if r[0] in ("s", "vcc")}
    if p.is_valu:
        if c.is_valu and c.is_dpp and (vw & c.rd): n = max(n, 2)
        if c.is_perm and (vw & c.rd): n = max(n, 2)
        if c.is_rdlane and (vw & c.rd): n = max(n, 1)
        if c.is_mfma and (vw & c.rd): n = max(n, 2)
        if p.is_trans and c.is_valu and (vw & c.rd): n = max(n, 1)
        if p.is_trans and c.is_mfma and (vw & c.rd): n = max(n, 2)
        if sw:
            if c.is_valu and (sw & c.rd): n = max(n, 4 if (c.is_rdlane or c.op.startswith("v_writelane")) else 2)
            if c.is_vmem and (sw & c.rd): n = max(n, 5)
            if c.is_salu and (sw & c.rd): n = max(n, 1)
        if ("exec", 0) in p.wr:
            if c.is_dpp: n = max(n, 5)
            if c.is_mfma or c.is_rdlane or c.is_perm: n = max(n, 4)
    if p.is_mfma:
        ps = passes(p.op)
        full = {4: 8, 8: 12}[ps]; part = {4: 6, 8: 10}[ps]; war = {4: 3, 8: 7}[ps]
        if c.is_mfma:
            if p.wr & c.srcAB: n = max(n, full)
            if p.wr & c.srcC and not (p.wr == c.srcC and passes(c.op) == ps): n = max(n, part)
            if p.wr & c.wr and not (p.wr == c.srcC): n = max(n, part)
        else:
            if p.wr & (c.rd | c.wr): n = max(n, full)
            if c.is_valu and (p.srcC & c.wr): n = max(n, war)
    if p.is_salu and ("m0", 0) in p.wr and c.is_lds_dma: n = max(n, 1)
    if p.store_data and (p.store_data & c.wr): n = max(n, 2)
    return n

class Asm:
    def __init__(self):
        self.lines = []
        self.hist = []
    def raw(self, s):
        self.lines.append(s)
    def label(self, name):
        self.lines.append(name + ":")
    def flush(self):
        self.hist = []
    def __call__(self, text):
        for t in text.split("\n"):
            t = t.strip()
            if not t or t.startswith(";"):
                if t: self.lines.append("    " + t)
                continue
            if t.endswith(":"):
                self.label(t[:-1]); continue
            ins = Ins(t)
            dist = 0; pad = 0
            for p in reversed(self.hist):
                k = need(p, ins)
                if k > dist: pad = max(pad, k - dist)
                dist += p.states
                if dist > 16: break
            while pad > 0:
                k = min(pad, 16)
                nop = Ins("s_nop %d" % (k - 1))
                self.lines.append("    " + nop.text); self.hist.append(nop)
                pad -= k
            self.lines.append("    " + t)
            self.hist.append(ins)
            self.hist = self.hist[-24:]
    def text(self):
        return "\n".join(self.lines) + "\n"

def v(n, k=1):
    return "v%d" % n if k == 1 else "v[%d:%d]" % (n, n + k - 1)
def s(n, k=1):
    return "s%d" % n if k == 1 else "s[%d:%d]" % (n, n + k - 1)
```

```python
import sys
from asmlib import Asm, v, s
NAME = "sequential_preLN__gqa_block_cached__geglu_ffn__decode"
def gen(A, B, st, ld, N=200, sleep=None):
    a = Asm()
    a("s_load_dwordx8 s[32:39], s[0:1], 64")
    a("s_waitcnt lgkmcnt(0)")
    a("s_mov_b32 s60, s38"); a("s_and_b32 s61, s39, 0xffff"); a("s_mov_b32 s62, 0x800000"); a("s_mov_b32 s63, 0x00020000")
    a("s_mov_b32 s64, s36"); a("s_and_b32 s65, s37, 0xffff"); a("s_mov_b32 s66, 256"); a("s_mov_b32 s67, 0x00020000")
    a("s_cmp_eq_u32 s2, %d" % A); a("s_cbranch_scc1 L_A")
    a("s_cmp_eq_u32 s2, %d" % B); a("s_cbranch_scc1 L_B")
    a("s_endpgm")
    for role in "AB":
        a.label("L_" + role); a.flush()
        a("s_mov_b64 exec, 1")
        a("v_mov_b32 v1, %d" % (0x1000 if role == "A" else 0x2000))
        a("v_mov_b32 v2, %d" % (0x2000 if role == "A" else 0x1000))
        a("s_mov_b32 s10, 1")
        a("s_getreg_b32 s20, hwreg(HW_REG_XCC_ID)")
        a("s_memrealtime s[12:13]")
        a.label("L_loop" + role); a.flush()
        a("s_cmp_eq_u32 s10, 11"); a("s_cbranch_scc0 L_ns" + role)
        a("s_memrealtime s[12:13]")
        a.label("L_ns" + role); a.flush()
        a("v_mov_b32 v3, s10")
        if role == "A":
            a("buffer_store_dword v3, v1, s[60:63], 0 offen %s" % st)
        a("s_mov_b32 s11, 100000")
        a.label("L_poll" + role); a.flush()
        a("buffer_load_dword v4, v2, s[60:63], 0 offen %s" % ld)
        a("s_waitcnt vmcnt(0)")
        a("v_cmp_eq_u32 vcc, v3, v4")
        a("s_cbranch_vccnz L_ok" + role)
        if sleep is not None: a("s_sleep %d" % sleep)
        a("s_sub_u32 s11, s11, 1")
        a("s_cbranch_scc0 L_poll" + role)
        a("s_branch L_fin" + role)
        a.label("L_ok" + role); a.flush()
        if role == "B":
            a("buffer_store_dword v3, v1, s[60:63], 0 offen %s" % st)
        a("s_add_u32 s10, s10, 1")
        a("s_cmp_le_u32 s10, %d" % (N + 10)); a("s_cbranch_scc1 L_loop" + role)
        a.label("L_fin" + role); a.flush()
        a("s_memrealtime s[14:15]")
        a("s_waitcnt lgkmcnt(0)")
        a("s_sub_u32 s14, s14, s12")
        a("v_mov_b32 v4, s14"); a("v_mov_b32 v5, s10"); a("v_mov_b32 v6, s20"); a("v_mov_b32 v7, 0")
        a("v_mov_b32 v1, %d" % (0 if role == "A" else 16))
        a("buffer_store_dwordx4 v[4:7], v1, s[64:67], 0 offen")
        a("s_endpgm")
    return wrap(a, 256, 64, 0, 16)
def wrap(a, grid, block, lds, vg):
    out = ["; @launch grid=(%d,1,1) block=(%d,1,1) lds=%d" % (grid, block, lds),
      '.amdgcn_target "amdgcn-amd-amdhsa--gfx950"', ".text", ".globl %s_kernel" % NAME, ".p2align 8",
      ".type %s_kernel,@function" % NAME, "%s_kernel:" % NAME, a.text().rstrip(), '.section .rodata,"a"', ".p2align 6",
      ".amdhsa_kernel %s_kernel" % NAME, "  .amdhsa_next_free_vgpr %d" % vg, "  .amdhsa_next_free_sgpr 102",
      "  .amdhsa_accum_offset %d" % vg, "  .amdhsa_group_segment_fixed_size 0", "  .amdhsa_kernarg_size 96",
      "  .amdhsa_user_sgpr_count 2", "  .amdhsa_user_sgpr_kernarg_segment_ptr 1", "  .amdhsa_system_sgpr_workgroup_id_x 1",
      ".end_amdhsa_kernel"]
    return "\n".join(out) + "\n"
if __name__ == "__main__":
    i = 0
    for (A, B) in ((0, 8), (0, 1), (0, 4)):
        for st, ld in (("sc1", "sc1"), ("sc0 sc1", "sc0 sc1"), ("", "sc1"), ("sc0", "sc0"), ("sc1", "sc0 sc1"), ("", "nt"), ("nt sc1", "sc1")):
            if (A, B) != (0, 8) and st in ("", "sc0"): continue
            fn = "pp_%d_%d_%s_%s.s" % (A, B, st.replace(" ", "") or "plain", ld.replace(" ", ""))
            open(fn, "w").write(gen(A, B, st, ld))
            print(fn)
```

```python
import sys
from asmlib import Asm, v, s
from pp import wrap
def gen(nw=8, depth=32, pat="kv", nt=" nt", grid=256, interleave=0, lds=0):
    a = Asm()
    a("s_memrealtime s[100:101]")
    a("s_load_dwordx16 s[16:31], s[0:1], 0")
    a("s_load_dwordx8 s[32:39], s[0:1], 64")
    a("v_lshrrev_b32 v1, 6, v0")
    a("v_and_b32 v0, 63, v0")
    a("v_readfirstlane_b32 s3, v1")
    per_wg = (1 << 26) // grid
    per_w = per_wg // nw
    nl = per_w // 1024
    if pat == "kv":
        a("v_bfe_u32 v1, v0, 2, 3"); a("v_lshlrev_b32 v1, 9, v1"); a("v_and_b32 v3, 3, v0"); a("v_lshl_add_u32 v1, v3, 4, v1")
        a("v_lshrrev_b32 v3, 5, v0"); a("v_lshl_add_u32 v1, v3, 6, v1")
        a("v_lshrrev_b32 v2, 4, v0"); a("v_lshlrev_b32 v2, 9, v2"); a("v_and_b32 v3, 15, v0"); a("v_lshl_add_u32 v2, v3, 4, v2")
        ko = (0, 128, 256, 384); vo = (0, 256, 2048, 2304)
    elif pat == "lin":
        a("v_lshlrev_b32 v1, 4, v0"); a("v_lshlrev_b32 v2, 4, v0")
        ko = vo = (0, 1024, 2048, 3072)
    elif pat == "std":
        a("v_and_b32 v1, 15, v0"); a("v_lshlrev_b32 v1, 8, v1"); a("v_lshrrev_b32 v3, 4, v0"); a("v_lshl_add_u32 v1, v3, 4, v1")
        a("v_mov_b32 v2, v1")
        ko = vo = (0, 64, 128, 192)
    if grid == 256:
        a("s_and_b32 s4, s2, 15"); a("s_lshl_b32 s48, s4, 22"); a("s_lshr_b32 s6, s2, 4"); a("s_lshl_b32 s9, s6, 18"); a("s_add_u32 s48, s48, s9")
    else:
        a("s_mul_i32 s48, s2, %d" % per_wg)
    if interleave == 2:
        a("s_lshl_b32 s48, s4, 22"); a("s_mul_i32 s9, s6, %d" % nw); a("s_add_u32 s9, s9, s3"); a("s_lshl_b32 s9, s9, 12"); step = 4096 * nw * 16
    elif interleave:
        a("s_lshl_b32 s9, s3, 12"); step = 4096 * nw
    else:
        a("s_mul_i32 s9, s3, %d" % per_w); step = 4096
    a("s_add_u32 s48, s48, s9")
    a("s_mov_b32 s49, s48")
    a("s_waitcnt lgkmcnt(0)")
    for d, b, sz in ((40, 18, 1 << 26), (44, 20, 1 << 26), (60, 38, 0x800000)):
        a("s_mov_b32 s%d, s%d" % (d, b)); a("s_and_b32 s%d, s%d, 0xffff" % (d + 1, b + 1)); a("s_mov_b32 s%d, 0x%x" % (d + 2, sz)); a("s_mov_b32 s%d, 0x00020000" % (d + 3))
    a("s_memrealtime s[98:99]")
    n = 0
    for ten in range(2):
        for i in range(nl):
            if n >= depth: a("s_waitcnt vmcnt(%d)" % (depth - 1))
            r = 8 + 4 * (n % depth)
            a("buffer_load_dwordx4 %s, v%d, s[%d:%d], s%d offen offset:%d%s" % (v(r, 4), 1 + ten, 40 + 4 * ten, 43 + 4 * ten, 48 + ten, (ko, vo)[ten][i % 4], nt))
            if i % 4 == 3: a("s_add_u32 s%d, s%d, %d" % (48 + ten, 48 + ten, step))
            n += 1
        if ten == 0: a("s_memrealtime s[96:97]")
    a("s_memrealtime s[94:95]")
    a("s_waitcnt vmcnt(0)")
    a("s_memrealtime s[92:93]")
    a("s_waitcnt lgkmcnt(0)")
    a("v_mov_b32 v4, 0")
    for k, sp in enumerate((100, 98, 96, 94, 92)):
        a("v_writelane_b32 v4, s%d, %d" % (sp, k))
    a("v_lshlrev_b32 v5, 2, v0")
    a("s_and_b32 s9, s2, 255"); a("s_mul_i32 s9, s9, 12"); a("s_and_b32 s3, s3, 7"); a("s_add_u32 s9, s9, s3"); a("s_lshl_b32 s9, s9, 6")
    a("s_add_u32 s9, s9, 0x%x" % (0x400000 + 4 * 64))
    a("s_mov_b64 exec, 0xffff")
    a("buffer_store_dword v4, v5, s[60:63], s9 offen")
    a("s_endpgm")
    vg = (8 + 4 * depth + 7) // 8 * 8
    return wrap(a, grid, 64 * nw, lds, vg)
if __name__ == "__main__":
    cfgs = {
     "a_8_3_il1": dict(depth=3, lds=100000, interleave=1),
     "b_8_4_il1": dict(depth=4, lds=100000, interleave=1),
     "c_8_5_il1": dict(depth=5, lds=100000, interleave=1),
     "d_8_6_il1": dict(depth=6, lds=100000, interleave=1),
     "e_8_7_il1": dict(depth=7, lds=100000, interleave=1),
     "f_8_8_il1": dict(depth=8, lds=100000, interleave=1),
     "g_4_8_il1": dict(nw=4, depth=8, lds=100000, interleave=1),
     "h_4_12_il1": dict(nw=4, depth=12, lds=100000, interleave=1),
     "i_4_16_il1": dict(nw=4, depth=16, lds=100000, interleave=1),
     "j_4_32_il1": dict(nw=4, depth=32, lds=100000, interleave=1),
    }
    for k, c in cfgs.items():
        open("st_%s.s" % k, "w").write(gen(**c))
```
